```python
import torch

def _softmax(x, axis=-1):
    return torch.softmax(x, dim=axis)

def _gelu(x):
    return torch.nn.functional.gelu(x, approximate='tanh')

def _silu(x):
    return torch.nn.functional.silu(x)

def _sigmoid(x):
    return torch.sigmoid(x)

def _layernorm(x, axis=-1, eps=1e-05):
    m = x.mean(dim=axis, keepdim=True)
    v = x.var(dim=axis, keepdim=True, unbiased=False)
    return (x - m) / torch.sqrt(v + eps)

def _scatter_add(tgt, idx, src, axis=0):
    return tgt.clone().index_add_(axis, idx, src)

def _segment_sum(src, seg, n):
    out = torch.zeros((n,) + src.shape[1:], dtype=src.dtype)
    return out.index_add_(0, seg, src)

def _pad(x, pw):
    flat = tuple((v for pair in reversed(pw) for v in pair))
    return torch.nn.functional.pad(x, flat)
kernel_name = 'adaLN_cond__linear_kernel_hedgehog__dense_activation_relu__prompt'

def setup_inputs():

    _w = lambda a: (lambda t: t.to(torch.bfloat16) if t.is_floating_point() else t)(torch.as_tensor(a))

    def _A_setup():
        B, S, D, H = (1, 2048, 512, 32)
        Dh = D // H
        return {'x': _w((lambda *s: torch.randn(*s, dtype=torch.bfloat16) * 0.05)(B, S, D)), 'wqkv': _w((lambda *s: torch.randn(*s, dtype=torch.bfloat16) * 0.4)(D, 3 * D)), 'w_phi': _w((lambda *s: torch.randn(*s, dtype=torch.bfloat16) * 0.4)(H, Dh, Dh) * Dh ** (-0.5)), 'wo': _w((lambda *s: torch.randn(*s, dtype=torch.bfloat16) * 0.05)(D, D))}
    _A_in = _A_setup()

    def _B_setup():
        B, S, D, Dff = (1, 2048, 512, 1376)
        return {'x': _w((lambda *s: torch.randn(*s, dtype=torch.bfloat16) * 0.05)(B, S, D)), 'w1': _w((lambda *s: torch.randn(*s, dtype=torch.bfloat16) * 0.05)(D, Dff)), 'w2': _w((lambda *s: torch.randn(*s, dtype=torch.bfloat16) * 0.05)(Dff, D))}
    _B_in = _B_setup()
    return {'A_x': _A_in['x'], 'A_wqkv': _A_in['wqkv'], 'A_w_phi': _A_in['w_phi'], 'A_wo': _A_in['wo'], 'B_x': _B_in['x'], 'B_w1': _B_in['w1'], 'B_w2': _B_in['w2'], 'c': _w((lambda *s: torch.randn(*s, dtype=torch.bfloat16) * 0.1)(1, 512) * 8.0), 'w_mod': _w((lambda *s: torch.randn(*s, dtype=torch.bfloat16) * 0.1)(512, 6 * 512) * 512 ** (-0.5) * 8.0)}

def reference(A_x, A_wqkv, A_w_phi, A_wo, B_x, B_w1, B_w2, c, w_mod):

    def _A_ref(x, wqkv, w_phi, wo):
        B, S, D = x.shape
        H = 32
        Dh = D // H
        qkv = (lambda x, *d: x.permute(*d))((x @ wqkv).reshape(B, S, 3, H, Dh), 2, 0, 3, 1, 4)
        q, k, v = (qkv[0], qkv[1], qkv[2])
        pq = torch.einsum('bhsd,hdf->bhsf', q, w_phi)
        pk = torch.einsum('bhsd,hdf->bhsf', k, w_phi)
        phi_q = torch.concatenate([_softmax(pq, axis=-1), _softmax(-pq, axis=-1)], axis=-1)
        phi_k = torch.concatenate([_softmax(pk, axis=-1), _softmax(-pk, axis=-1)], axis=-1)
        kv = torch.einsum('bhsf,bhsd->bhfd', phi_k, v)
        z = torch.einsum('bhsf->bhf', phi_k)
        num = torch.einsum('bhqf,bhfd->bhqd', phi_q, kv)
        den = torch.einsum('bhqf,bhf->bhq', phi_q, z)[..., None] + 1e-06
        o = num / den
        return (lambda x, *d: x.permute(*d))(o, 0, 2, 1, 3).reshape(B, S, D) @ wo

    def _B_ref(x, w1, w2):
        h = torch.einsum('bsd,df->bsf', x, w1)
        zero = torch.zeros_like(h)
        h = torch.maximum(h, zero)
        return torch.einsum('bsf,fd->bsd', h, w2)
    x = A_x
    mod = (_silu(c) @ w_mod).reshape(c.shape[0], 6, 1, -1)
    sa, ca, ga, sb, cb, gb = (mod[:, 0].clone(), mod[:, 1].clone(), mod[:, 2].clone(), mod[:, 3].clone(), mod[:, 4].clone(), mod[:, 5].clone())
    h = _layernorm(x, axis=-1) * (1 + ca) + sa
    x = x + ga * _A_ref(h, A_wqkv, A_w_phi, A_wo)
    h = _layernorm(x, axis=-1) * (1 + cb) + sb
    x = x + gb * _B_ref(h, B_w1, B_w2)
    return x
```

```python
import re

TRANS = ("v_exp_f32", "v_log_f32", "v_rcp_f32", "v_rsq_f32", "v_sqrt_f32", "v_sin_f32", "v_cos_f32")
_reg = re.compile(r"(?<![\w.])(-?\|?)([vsa])(?:\[(\d+):(\d+)\]|(\d+))(?![\w])")


def regs_of(opnd):
    out = set()
    o = opnd.strip()
    if o in ("vcc", "vcc_lo", "vcc_hi"):
        return {"vcc"}
    if o in ("exec", "exec_lo", "exec_hi"):
        return {"exec"}
    if o == "m0":
        return {"m0"}
    for m in _reg.finditer(o):
        k = m.group(2)
        if m.group(3) is not None:
            for r in range(int(m.group(3)), int(m.group(4)) + 1):
                out.add(f"{k}{r}")
        else:
            out.add(f"{k}{m.group(5)}")
    return out


def split_ops(rest):
    ops, depth, cur = [], 0, ""
    for ch in rest:
        if ch == "[":
            depth += 1
        if ch == "]":
            depth -= 1
        if ch == "," and depth == 0:
            ops.append(cur.strip()); cur = ""
        else:
            cur += ch
    if cur.strip():
        ops.append(cur.strip())
    return ops


class I:
    __slots__ = ("text", "op", "dst", "src", "cls", "tok", "opt", "passes", "mf", "wide", "dpp")

    def __init__(self, text, tok=None, opt=False):
        self.text = text.strip()
        self.tok = tok
        self.opt = opt
        self.passes = 0
        self.mf = None
        self.wide = False
        self.dpp = False
        t = self.text.split(";")[0].strip()
        if t.endswith(":") or t.startswith(".") or t.startswith("@") or not t:
            self.op = t; self.dst = set(); self.src = set()
            self.cls = "label" if t.endswith(":") else ("pseudo" if t.startswith("@") else "dir")
            return
        p = t.split(None, 1)
        op = p[0]
        self.op = op
        ops = split_ops(p[1]) if len(p) > 1 else []
        if ops:
            last = ops[-1].split()
            mods = last[1:]
            ops[-1] = last[0]
        else:
            mods = []
        R = [regs_of(o) for o in ops]
        allr = set().union(*R) if R else set()
        dst, src = set(), set()
        if op.startswith("v_mfma"):
            self.cls = "mfma"
            dst = R[0]; src = R[1] | R[2] | R[3]
            self.passes = 8 if "32x32" in op else 4
            self.mf = (R[0], R[1] | R[2], R[3])
        elif op.startswith("v_"):
            self.cls = "valu"
            base = op.replace("_e32", "").replace("_e64", "").replace("_dpp", "").replace("_sdwa", "")
            if "permlane" in op and "swap" in op:
                dst = R[0] | R[1]; src = R[0] | R[1]
            else:
                dst = R[0]; src = set().union(*R[1:]) if len(R) > 1 else set()
                if base.startswith(("v_fmac", "v_dot2c", "v_mac")):
                    src |= R[0]
                if base.startswith("v_cndmask") and len(ops) == 3:
                    src |= {"vcc"}
                if base in ("v_add_co_u32", "v_sub_co_u32", "v_addc_co_u32"):
                    dst = R[0] | R[1]; src = set().union(*R[2:])
            if "_dpp" in op or any(m.startswith(("quad_perm", "row_", "wave_")) for m in mods):
                self.dpp = True
                src |= R[0]
            if base in TRANS:
                self.cls = "trans"
            if base.startswith("v_dot"):
                self.cls = "dl"
        elif op.startswith("ds_"):
            self.cls = "ds"
            if op.startswith("ds_read") or "rtn" in op or "permute" in op or "swizzle" in op:
                dst = R[0]; src = set().union(*R[1:])
            else:
                src = allr
        elif op.startswith(("buffer_", "global_")):
            self.cls = "vmem"
            if "lds" in mods or "_lds_" in op:
                src = allr | {"m0"}
            elif "load" in op:
                dst = R[0]; src = set().union(*R[1:])
            else:
                src = allr
                self.wide = op.endswith(("x3", "x4"))
        elif op.startswith(("s_load", "s_memtime", "s_memrealtime", "s_buffer_load")):
            self.cls = "smem"
            dst = R[0]; src = set().union(*R[1:]) if len(R) > 1 else set()
        elif op.startswith("s_"):
            self.cls = "salu"
            if op.startswith(("s_cmp", "s_bitcmp", "s_cbranch", "s_branch", "s_waitcnt", "s_barrier", "s_nop", "s_sleep", "s_setprio", "s_endpgm")):
                src = allr
            else:
                dst = R[0]; src = set().union(*R[1:]) if len(R) > 1 else set()
                if "saveexec" in op:
                    dst = dst | {"exec"}
        else:
            raise ValueError("unknown op: " + text)
        self.dst, self.src = dst, src


class S(list):
    def __call__(self, text, tok=None, opt=False):
        for ln in text.split("\n"):
            if ln.split(";")[0].strip():
                self.append(I(ln, tok, opt))
        return self

    def wait(self, *toks):
        for t in toks:
            self.append(I(f"@wait {t}"))

    def waitall(self, vm=True, lgkm=True):
        self.append(I("@all " + ("v" if vm else "") + ("l" if lgkm else "")))

    def barrier(self, lds=True):
        if lds:
            self.append(I("@all l"))
        self.append(I("s_barrier"))


def merge(a, b, ra=None):
    out = S()
    n = len(a)
    m = len(b)
    done = 0
    for k, g in enumerate(a):
        out.extend(g)
        upto = (m * (k + 1)) // n
        out.extend(b[done:upto])
        done = upto
    return out


def insert_waits(ins):
    out = []
    vq, lq = [], []
    smem = False

    def need(q, idx):
        return sum(1 for e in q[idx + 1:] if not e.opt)

    for x in ins:
        wv = wl = None
        if x.cls == "pseudo":
            p = x.op.split()
            if p[0] == "@all":
                if "v" in p[1] and vq: wv = 0
                if "l" in p[1] and (lq or smem): wl = 0
            elif p[0] == "@wait":
                for q, nm in ((vq, "v"), (lq, "l")):
                    idxs = [k for k, e in enumerate(q) if e.tok == p[1]]
                    if idxs:
                        n = need(q, idxs[-1])
                        if nm == "v": wv = n
                        else: wl = n
            elif p[0] == "@reset":
                vq, lq, smem = [], [], False
                out.append(x)
                continue
        else:
            touch = x.src | x.dst
            if touch:
                for k in range(len(vq) - 1, -1, -1):
                    if vq[k].dst & touch:
                        wv = need(vq, k); break
                for k in range(len(lq) - 1, -1, -1):
                    if lq[k].dst & touch:
                        wl = need(lq, k); break
            if x.op == "s_waitcnt":
                m = re.search(r"vmcnt\((\d+)\)", x.text)
                if m and int(m.group(1)) == 0: vq = []
                m = re.search(r"lgkmcnt\((\d+)\)", x.text)
                if m and int(m.group(1)) == 0: lq = []; smem = False
        if wl is not None and smem:
            wl = 0
        parts = []
        if wv is not None:
            wv = min(wv, 63)
            parts.append(f"vmcnt({wv})")
            keep, c = [], 0
            for e in reversed(vq):
                if c >= wv: break
                keep.append(e)
                if not e.opt: c += 1
            vq = list(reversed(keep))
        if wl is not None:
            wl = min(wl, 15)
            parts.append(f"lgkmcnt({wl})")
            keep, c = [], 0
            for e in reversed(lq):
                if c >= wl: break
                keep.append(e)
                if not e.opt: c += 1
            lq = list(reversed(keep))
            if wl == 0: smem = False
        if parts:
            out.append(I("s_waitcnt " + " ".join(parts)))
        if x.cls == "pseudo":
            continue
        out.append(x)
        if x.cls == "vmem": vq.append(x)
        elif x.cls == "ds": lq.append(x)
        elif x.cls == "smem":
            lq.append(x); smem = True
    return out


def isv(r): return r[0] in "va" and r != "vcc"
def iss(r): return r[0] == "s" or r == "vcc"


def required(p, c):
    n = 0
    pv = p.cls in ("valu", "trans", "dl")
    cv = c.cls in ("valu", "trans", "dl")
    if pv:
        wv = {r for r in p.dst if isv(r)}
        ws = {r for r in p.dst if iss(r)}
        if c.cls == "mfma" and wv & c.src: n = max(n, 3 if p.cls == "dl" else 2)
        if cv and wv & c.src:
            if c.dpp: n = max(n, 2)
            if "permlane" in c.op: n = max(n, 2)
            if c.op.startswith(("v_readlane", "v_readfirstlane")): n = max(n, 1)
            if p.cls == "trans" and c.cls != "trans": n = max(n, 1)
            if "sdwa" in p.op: n = max(n, 1)
        if p.cls == "trans" and c.cls in ("vmem", "ds") and wv & c.src: n = max(n, 1)
        if p.cls == "dl" and (wv & (c.src | c.dst)):
            same = c.op == p.op
            if same:
                t = c.text.split(";")[0].split(None, 1)[1]
                ops = split_ops(t)
                ab = regs_of(ops[1]) | regs_of(ops[2].split()[0])
                if wv & ab: n = max(n, 3)
            else:
                n = max(n, 3)
        if ws & c.src:
            if cv: n = max(n, 4 if c.op.startswith(("v_readlane", "v_writelane")) else 2)
            if c.cls == "vmem": n = max(n, 5)
    if p.cls == "mfma":
        D, AB, C = p.mf
        big = 12 if p.passes == 8 else 8
        if c.cls == "mfma":
            D2, AB2, C2 = c.mf
            if D & AB2: n = max(n, big)
            if D & C2 and not (D == C2 and p.passes == c.passes): n = max(n, big - 2)
            if D & D2 and not (D == C2 and p.passes == c.passes): n = max(n, big)
        elif cv or c.cls in ("vmem", "ds"):
            if D & (c.src | c.dst): n = max(n, big)
            if C & c.dst: n = max(n, 7 if p.passes == 8 else 3)
    if p.cls == "salu" and "m0" in p.dst and "m0" in c.src and c.cls == "vmem": n = max(n, 1)
    if p.cls == "vmem" and p.wide and (cv or c.cls in ("vmem", "ds")) and (p.src & c.dst): n = max(n, 2)
    return n


def pad_hazards(ins):
    out = []
    hist = []
    for x in ins:
        if x.cls in ("dir", "pseudo"):
            if x.cls == "dir": out.append(x)
            continue
        if x.cls == "label":
            out.append(x); continue
        needn = 0
        dist = 0
        for p in reversed(hist):
            if dist >= 13: break
            r = required(p, x)
            if r > dist: needn = max(needn, r - dist)
            dist += (int(p.text.split()[1], 0) + 1) if p.op == "s_nop" else 1
        if needn:
            nop = I(f"s_nop {needn - 1}")
            out.append(nop); hist.append(nop)
        out.append(x); hist.append(x)
        if len(hist) > 40: hist = hist[-20:]
    return out


def finish(ins):
    a = pad_hazards(insert_waits(ins))
    return "\n".join(("" if x.cls in ("label", "dir") else "    ") + x.text for x in a) + "\n"


class RA:
    def __init__(self, lo, hi, kind="v"):
        self.free_ = set(range(lo, hi)); self.kind = kind; self.hi = 0

    def get(self, n=1, align=None):
        al = align or (1 if n == 1 else 2 if n == 2 else 4)
        for b in sorted(self.free_):
            if b % al == 0 and all(b + k in self.free_ for k in range(n)):
                for k in range(n): self.free_.discard(b + k)
                self.hi = max(self.hi, b + n)
                return b
        raise RuntimeError(f"out of regs for {n}; free={sorted(self.free_)}")

    def put(self, b, n=1):
        for k in range(n):
            assert b + k not in self.free_, b + k
            self.free_.add(b + k)


def v(b, n=1): return f"v{b}" if n == 1 else f"v[{b}:{b + n - 1}]"
def s(b, n=1): return f"s{b}" if n == 1 else f"s[{b}:{b + n - 1}]"
```

```python
import sys, os
from core import *

KNAME = "adaLN_cond__linear_kernel_hedgehog__dense_activation_relu__prompt"
STAMPS = int(os.environ.get("STAMPS", "0"))
SPIN = 20000

MODS, MODB, UB1, UB2, ZERO, GAB, GEMV = 0, 2048, 4096, 4864, 5632, 5696, 6400
A0 = 8192
KB, VB, QB = A0, A0 + 32768, A0 + 65536
BB, RB = 106496, 147456
XS, XSW = QB, 22528
KVI, ZI = RB, RB + 2560
RS = 208
LDS = 163840
W_MOD = 0x1000
W_OF, W_XF, W_HF = 0x20000, 0x40000, 0x60000
W_ST = 0x80000
W_KV, W_O, W_X1, W_H = 0x100000, 0x200000, 0x400000, 0x600000
WS_BYTES = 0x1000000
rX, rWQ, rPH, rWO, rW1, rW2, rC, rWM, rOUT, rWS = 40, 44, 48, 52, 56, 60, 64, 68, 72, 76
sI, sJ, sW, sTAG, sQ, sXCD, sHW = 3, 4, 5, 6, 7, 8, 9
sT0, sT1, sT2, sT3, sT4, sT5 = 10, 11, 12, 13, 14, 15
sONE, sL2E, sU, sN6, sCNT, sB0, sB1 = 80, 81, 82, 83, 84, 85, 86
ST0 = 16
def srd(r): return s(r, 4)

stamp_n = {"C": 0, "H": 0}
stamp_names = {"C": [], "H": []}
def stamp(o, role, name):
    if not STAMPS: return
    for r in role:
        k = stamp_n[r]; stamp_n[r] += 1
        stamp_names[r].append(name)
    assert k < 12
    o(f"s_memtime {s(ST0 + 2 * k, 2)}")

lab = [0]
def L(p="L"):
    lab[0] += 1
    return f"{p}_{lab[0]}"

def dma(o, voff, rs, soff, m0expr_s, m0_imm, tok):
    o(f"s_add_u32 m0, {m0expr_s}, {m0_imm}" if m0expr_s else f"s_mov_b32 m0, {m0_imm}")
    o(f"buffer_load_dwordx4 {v(voff)}, {srd(rs)}, {soff} offen lds", tok=tok)

def poll_flags(o, vaddr, soff, vt):
    l1, l2 = L("P"), L("P")
    o.waitall()
    o(f"""s_mov_b32 {s(sCNT)}, 0
{l1}:
buffer_load_dword {v(vt)}, {v(vaddr)}, {srd(rWS)}, {soff} offen sc1
s_add_u32 {s(sCNT)}, {s(sCNT)}, 1
s_waitcnt vmcnt(0)
v_cmp_ne_u32 vcc, {s(sTAG)}, {v(vt)}
s_cmp_gt_u32 {s(sCNT)}, {SPIN}
s_cbranch_scc1 {l2}
s_cbranch_vccnz {l1}
{l2}:""")

def set_flag(o, base, vz, vt):
    o(f"""s_lshl_b32 {s(sT0)}, {s(sI)}, 4
s_add_u32 {s(sT0)}, {s(sT0)}, {s(sJ)}
s_lshl_b32 {s(sT0)}, {s(sT0)}, 2
s_add_u32 {s(sT0)}, {s(sT0)}, {s(sW)}
s_lshl_b32 {s(sT0)}, {s(sT0)}, 7
s_add_u32 {s(sT0)}, {s(sT0)}, {base}
v_mov_b32 {v(vt)}, {s(sTAG)}""")
    o.waitall(vm=True, lgkm=False)
    o(f"""s_mov_b64 exec, 1
buffer_store_dword {v(vt)}, off, {srd(rWS)}, {s(sT0)} sc1
s_mov_b64 exec, -1""")


def build():
    o = S()
    vL = 1
    vL16 = 2
    vH = 3
    o(f"""s_cmp_ge_u32 s2, 256
s_cbranch_scc1 L_end""")
    stamp(o, "CH", "start")
    for r, off in ((rWS, 88), (rWM, 64), (rC, 56), (rX, 0), (rWQ, 8), (rPH, 16), (rWO, 24), (rW1, 40), (rW2, 48), (rOUT, 72)):
        o(f"s_load_dwordx2 {s(r, 2)}, s[0:1], {off}")
    o(f"""v_and_b32 {v(vL)}, 63, v0
v_lshrrev_b32 v4, 6, v0
s_and_b32 {s(sXCD)}, s2, 7
s_lshr_b32 {s(sQ)}, s2, 3
v_readfirstlane_b32 {s(sW)}, v4
s_lshr_b32 {s(sI)}, {s(sQ)}, 4
s_lshl_b32 {s(sT0)}, {s(sXCD)}, 1
s_add_u32 {s(sI)}, {s(sI)}, {s(sT0)}
s_and_b32 {s(sJ)}, {s(sQ)}, 15
v_lshlrev_b32 {v(vL16)}, 4, {v(vL)}
v_lshrrev_b32 {v(vH)}, 5, {v(vL)}
s_mov_b32 {s(sONE)}, 0x3f803f80
s_mov_b32 {s(sL2E)}, 0x3fb8aa3b""")
    for r, n in ((rWS, WS_BYTES), (rWM, 512 * 6144), (rC, 1024), (rX, 2097152), (rWQ, 512 * 3072), (rPH, 16384), (rWO, 524288),
                 (rW1, 512 * 2752), (rW2, 1376 * 1024), (rOUT, 2097152)):
        o(f"s_mov_b32 {s(r + 2)}, {n}\ns_mov_b32 {s(r + 3)}, 0x20000")
    lcp = L()
    o(f"""s_cmp_lg_u32 {s(sW)}, 7
s_cbranch_scc1 {lcp}
s_getpc_b64 {s(sT2, 2)}
L_pc:
v_lshl_add_u32 v4, {v(vL)}, 5, {s(sQ)}
v_lshlrev_b32 v4, 7, v4
v_min_u32 v4, L_end-L_pc, v4""")
    o(f"global_load_dword v30, v4, {s(sT2, 2)}", opt=True)
    o(f"{lcp}:")
    o(f"""v_lshrrev_b32 v6, 1, {v(vL)}
s_lshl_b32 {s(sT0)}, {s(sW)}, 5
v_add_u32 v6, {s(sT0)}, v6
v_lshlrev_b32 v7, 2, v6
s_movk_i32 {s(sT1)}, 12288
v_and_b32 v8, 1, {v(vL)}
v_lshlrev_b32 v8, 4, v8
v_mad_u32_u24 v6, v6, {s(sT1)}, v8
s_lshl_b32 {s(sT0)}, {s(sXCD)}, 5
s_add_u32 {s(sT0)}, {s(sT0)}, {s(sQ)}
s_lshl_b32 {s(sT0)}, {s(sT0)}, 5
s_add_u32 {s(sT1)}, {s(sT0)}, 6144
s_and_b32 {s(sHW)}, {s(sW)}, 3
s_waitcnt lgkmcnt(0)
s_load_dword {s(sTAG)}, {s(rWS, 2)}, 0""")
    lg = L()
    o(f"""s_cmp_gt_u32 {s(sXCD)}, 5
s_cbranch_scc1 {lg}""")
    o(f"buffer_load_dword v9, v7, {srd(rC)}, 0 offen", opt=True)
    o(f"buffer_load_dwordx4 v[12:15], v6, {srd(rWM)}, {s(sT0)} offen", opt=True)
    o(f"buffer_load_dwordx4 v[16:19], v6, {srd(rWM)}, {s(sT1)} offen", opt=True)
    o(f"""{lg}:
s_cmp_gt_u32 {s(sW)}, 3
s_cbranch_scc1 L_helper""")
    pre = list(o)
    c = compute(vL, vL16, vH)
    h = helper(vL, vL16, vH)
    a = pad_hazards(insert_waits(pre + list(c)))
    b = pad_hazards(insert_waits(pre + [I("L_helper:")] + list(h)))
    k = [i for i, x in enumerate(b) if x.op == "L_helper:"][0]
    allins = a + b[k:] + [I("L_end:"), I("s_endpgm")]
    return "\n".join(("" if x.cls in ("label", "dir") else "    ") + x.text for x in allins) + "\n"


def gemv_part(o, vL):
    lg = L()
    o(f"""s_cmp_gt_u32 {s(sXCD)}, 5
s_cbranch_scc1 {lg}""")
    o(f"""v_lshlrev_b32 v10, 16, v9
v_and_b32 v11, 0xffff0000, v9
v_mul_f32 v20, {s(sL2E)}, v10
v_mul_f32 v21, {s(sL2E)}, v11
v_exp_f32_e64 v20, -v20
v_exp_f32_e64 v21, -v21
v_add_f32 v20, 1.0, v20
v_add_f32 v21, 1.0, v21
v_rcp_f32 v20, v20
v_rcp_f32 v21, v21
s_mov_b32 {s(sT2)}, 0x05040100
s_mov_b32 {s(sT3)}, 0x07060302
v_mul_f32 v10, v10, v20
v_mul_f32 v11, v11, v21
v_cvt_pk_bf16_f32 v9, v10, v11""")
    for e in range(4):
        o(f"v_perm_b32 v{20 + 2 * e}, v{16 + e}, v{12 + e}, {s(sT2)}")
        o(f"v_perm_b32 v{21 + 2 * e}, v{16 + e}, v{12 + e}, {s(sT3)}")
    for e in range(8):
        o(f"v_dot2_f32_bf16 v{12 + e}, v{20 + e}, v9, 0")
    for e in range(4):
        o(f"v_permlane16_swap_b32 v{12 + 2 * e}, v{13 + 2 * e}")
    for e in range(4):
        o(f"v_add_f32 v{20 + e}, v{12 + 2 * e}, v{13 + 2 * e}")
    o("""v_permlane32_swap_b32 v20, v21
v_permlane32_swap_b32 v22, v23
v_add_f32 v12, v20, v21
v_add_f32 v13, v22, v23""")
    for m in ("quad_perm:[2,3,0,1]", "row_ror:4", "row_ror:8"):
        o(f"v_add_f32_dpp v12, v12, v12 {m} row_mask:0xf bank_mask:0xf")
        o(f"v_add_f32_dpp v13, v13, v13 {m} row_mask:0xf bank_mask:0xf")
    o(f"""v_and_b32 v14, 1, {v(vL)}
v_lshrrev_b32 v15, 4, {v(vL)}
v_lshl_add_u32 v14, v14, 3, v15
v_lshlrev_b32 v14, 5, v14
s_lshl_b32 {s(sT0)}, {s(sW)}, 2
s_add_u32 {s(sT0)}, {s(sT0)}, {GEMV}
v_add_u32 v14, {s(sT0)}, v14""")
    o(f"ds_write2_b32 v14, v12, v13 offset1:32", opt=True)
    o(f"{lg}:")


def softmax(o, ra, P, T):
    mx, mn, s1, s2 = ra.get(), ra.get(), ra.get(), ra.get()
    E = ra.get(16)
    o(f"v_max3_f32 {v(mx)}, {v(P)}, {v(P + 1)}, {v(P + 2)}")
    o(f"v_min3_f32 {v(mn)}, {v(P)}, {v(P + 1)}, {v(P + 2)}")
    for k in range(3, 15, 2):
        o(f"v_max3_f32 {v(mx)}, {v(mx)}, {v(P + k)}, {v(P + k + 1)}")
        o(f"v_min3_f32 {v(mn)}, {v(mn)}, {v(P + k)}, {v(P + k + 1)}")
    o(f"v_max_f32 {v(mx)}, {v(mx)}, {v(P + 15)}")
    o(f"v_min_f32 {v(mn)}, {v(mn)}, {v(P + 15)}")
    o(f"v_mul_f32 {v(mx)}, {s(sL2E)}, {v(mx)}")
    o(f"v_mul_f32 {v(mn)}, {s(sL2E)}, {v(mn)}")
    for k in range(16):
        o(f"v_fma_f32 {v(E + k)}, {v(P + k)}, {s(sL2E)}, -{v(mx)}")
        o(f"v_fma_f32 {v(P + k)}, -{v(P + k)}, {s(sL2E)}, {v(mn)}")
        o(f"v_exp_f32 {v(E + k)}, {v(E + k)}")
        o(f"v_exp_f32 {v(P + k)}, {v(P + k)}")
        if k == 2:
            o(f"v_add_f32 {v(s1)}, {v(E)}, {v(E + 1)}")
            o(f"v_add_f32 {v(s2)}, {v(P)}, {v(P + 1)}")
        elif k > 2:
            o(f"v_add_f32 {v(s1)}, {v(s1)}, {v(E + k - 1)}")
            o(f"v_add_f32 {v(s2)}, {v(s2)}, {v(P + k - 1)}")
    o(f"v_add_f32 {v(s1)}, {v(s1)}, {v(E + 15)}")
    o(f"v_add_f32 {v(s2)}, {v(s2)}, {v(P + 15)}")
    o(f"v_rcp_f32 {v(s1)}, {v(s1)}")
    o(f"v_rcp_f32 {v(s2)}, {v(s2)}")
    for k in range(0, 16, 2):
        o(f"v_mul_f32 {v(E + k)}, {v(s1)}, {v(E + k)}")
        o(f"v_mul_f32 {v(E + k + 1)}, {v(s1)}, {v(E + k + 1)}")
        o(f"v_cvt_pk_bf16_f32 {v(T + k // 2)}, {v(E + k)}, {v(E + k + 1)}")
    for k in range(0, 16, 2):
        o(f"v_mul_f32 {v(P + k)}, {v(s2)}, {v(P + k)}")
        o(f"v_mul_f32 {v(P + k + 1)}, {v(s2)}, {v(P + k + 1)}")
        o(f"v_cvt_pk_bf16_f32 {v(T + 8 + k // 2)}, {v(P + k)}, {v(P + k + 1)}")
    for r in (mx, mn, s1, s2): ra.put(r)
    ra.put(E, 16)


def chain(acc, vaddr, off0, X, ring, nring, ks0=0, nks=32):
    g = []
    pro = S()
    for k in range(min(nring, nks)):
        pro(f"ds_read_b128 {v(ring + 4 * k, 4)}, {v(vaddr)} offset:{off0 + k * 1024}")
    g.append(pro)
    for k in range(nks):
        x = S()
        r = ring + 4 * (k % nring)
        x(f"v_mfma_f32_32x32x16_bf16 {v(acc, 16)}, {v(r, 4)}, {v(X + 4 * k, 4)}, {'0' if k == 0 else v(acc, 16)}")
        if k + nring < nks:
            x(f"ds_read_b128 {v(r, 4)}, {v(vaddr)} offset:{off0 + (k + nring) * 1024}")
        g.append(x)
    return g


def stats_fin(o, ra, sS, sQn):
    a, b = sS[0], sQn[0]
    for r in sS[1:]: o(f"v_add_f32 {v(a)}, {v(a)}, {v(r)}")
    for r in sQn[1:]: o(f"v_add_f32 {v(b)}, {v(b)}, {v(r)}")
    t1, t2 = ra.get(), ra.get()
    o(f"""v_mov_b32 {v(t1)}, {v(a)}
v_mov_b32 {v(t2)}, {v(b)}
v_permlane32_swap_b32 {v(a)}, {v(t1)}
v_permlane32_swap_b32 {v(b)}, {v(t2)}
v_add_f32 {v(a)}, {v(a)}, {v(t1)}
v_add_f32 {v(b)}, {v(b)}, {v(t2)}
v_mul_f32 {v(a)}, 0x3b000000, {v(a)}
v_mul_f32 {v(t1)}, {v(a)}, {v(a)}
v_mov_b32 {v(t2)}, 0x3b000000
v_fma_f32 {v(b)}, {v(b)}, {v(t2)}, -{v(t1)}
v_max_f32 {v(b)}, 0, {v(b)}
v_add_f32 {v(b)}, 0x3727c5ac, {v(b)}
v_rsq_f32 {v(b)}, {v(b)}
v_mul_f32 {v(a)}, {v(a)}, {v(b)}""")
    ra.put(t1); ra.put(t2)
    for r in sS[1:] + sQn[1:]: ra.put(r)
    return b, a


def fold(o, vub, off, acc, U, Bv, rstd, mr):
    for q in range(4):
        o(f"ds_read_b128 {v(U + 4 * q, 4)}, {v(vub)} offset:{off + 16 * q}")
    for q in range(4):
        o(f"ds_read_b128 {v(Bv + 4 * q, 4)}, {v(vub)} offset:{off + 128 + 16 * q}")
    for k in range(16):
        o(f"v_fma_f32 {v(U + k)}, -{v(mr)}, {v(U + k)}, {v(Bv + k)}")
    for k in range(16):
        o(f"v_fma_f32 {v(acc + k)}, {v(rstd)}, {v(acc + k)}, {v(U + k)}")


def compute(vL, vL16, vH):
    o = S()
    ra = RA(32, 128)
    X = 128
    vx0, vx1 = ra.get(), ra.get()
    o(f"""v_lshrrev_b32 v4, 3, {v(vL)}
v_lshrrev_b32 v5, 4, {v(vL)}
v_xor_b32 v5, v5, {v(vL)}
v_and_b32 v5, 7, v5
v_lshlrev_b32 v5, 4, v5
v_lshl_add_u32 {v(vx0)}, v4, 10, v5
v_xor_b32 {v(vx1)}, 64, {v(vx0)}
s_lshl_b32 {s(sB0)}, {s(sI)}, 2
s_add_u32 {s(sB0)}, {s(sB0)}, {s(sW)}
s_lshl_b32 {s(sB0)}, {s(sB0)}, 15
s_mul_i32 {s(sB1)}, {s(sW)}, {XSW}""")
    lt = L()
    o(f"""s_cmp_lg_u32 {s(sW)}, 3
s_cbranch_scc1 {lt}
s_lshl_b32 {s(sT0)}, {s(sI)}, 4
s_add_u32 {s(sT0)}, {s(sT0)}, {s(sJ)}
s_lshl_b32 {s(sT0)}, {s(sT0)}, 13
v_lshlrev_b32 v4, 7, {v(vL)}""")
    o(f"buffer_load_dword v31, v4, {srd(rX)}, {s(sT0)} offen", opt=True)
    o(f"{lt}:")

    def xdma(c):
        for a in range(4):
            o(f"s_add_u32 {s(sT0)}, {s(sB0)}, {a * 8192 + c * 128}")
            dma(o, vx1 if a & 1 else vx0, rX, s(sT0), s(sB1), XS + (c % 5) * 4096 + a * 1024, f"x{c}")
    for c in range(5): xdma(c)
    gemv_part(o, vL)
    o.barrier()
    o(f"""s_mul_i32 {s(sTAG)}, {s(sTAG)}, 0x9E3779B1
s_add_u32 {s(sTAG)}, {s(sTAG)}, 0x7F4A7C15""")
    lg = L()
    o(f"""s_cmp_gt_u32 {s(sXCD)}, 5
s_cbranch_scc1 {lg}
s_cmp_lg_u32 {s(sW)}, 0
s_cbranch_scc1 {lg}
v_and_b32 v4, 15, {v(vL)}
v_lshlrev_b32 v5, 5, v4
ds_read_b128 v[12:15], v5 offset:{GEMV}
ds_read_b128 v[16:19], v5 offset:{GEMV + 16}
s_cmp_eq_u32 {s(sXCD)}, 1
s_cselect_b32 {s(sT0)}, 1.0, 0
s_cmp_eq_u32 {s(sXCD)}, 4
s_cselect_b32 {s(sT0)}, 1.0, {s(sT0)}
s_lshl_b32 {s(sT1)}, {s(sXCD)}, 5
s_add_u32 {s(sT1)}, {s(sT1)}, {s(sQ)}
s_lshl_b32 {s(sT1)}, {s(sT1)}, 7
s_add_u32 {s(sT1)}, {s(sT1)}, {W_MOD}
v_lshlrev_b32 v4, 3, v4
v_mov_b32 v21, {s(sTAG)}
s_waitcnt lgkmcnt(0)
v_add_f32 v12, v12, v13
v_add_f32 v14, v14, v15
v_add_f32 v16, v16, v17
v_add_f32 v18, v18, v19
v_add_f32 v12, v12, v14
v_add_f32 v16, v16, v18
v_add_f32 v12, v12, v16
v_cvt_pk_bf16_f32 v12, v12, v12
v_and_b32 v12, 0xffff0000, v12
v_add_f32 v12, {s(sT0)}, v12
v_cvt_pk_bf16_f32 v12, v12, v12
v_and_b32 v20, 0xffff0000, v12
s_mov_b64 exec, 0xffff""")
    o(f"buffer_store_dwordx2 v[20:21], v4, {srd(rWS)}, {s(sT1)} offen sc1", opt=True)
    o(f"""s_mov_b64 exec, -1
{lg}:""")
    stamp(o, "C", "gemv")
    vxr = [ra.get() for _ in range(4)]
    o(f"""v_and_b32 v4, 31, {v(vL)}
v_bfe_u32 v5, {v(vL)}, 1, 3
v_xor_b32 v5, v5, {v(vH)}
v_lshlrev_b32 v4, 7, v4
v_lshl_add_u32 v4, v5, 4, v4
s_add_u32 {s(sT0)}, {s(sB1)}, {XS}
""")
    for t in range(4):
        o(f"v_xor_b32 {v(vxr[t])}, {32 * t}, v4")
        o(f"v_add_u32 {v(vxr[t])}, {s(sT0)}, {v(vxr[t])}")
    sS = [ra.get(), ra.get()]; sQn = [ra.get(), ra.get()]
    for r in sS + sQn: o(f"v_mov_b32 {v(r)}, 0")
    for c in range(8):
        o.wait(f"x{c}")
        for t in range(4):
            o(f"ds_read_b128 {v(X + 16 * c + 4 * t, 4)}, {v(vxr[t])} offset:{(c % 5) * 4096}", tok=f"xr{c}")
        if c + 5 < 8:
            o.wait(f"xr{c}")
            xdma(c + 5)
        for r in range(16):
            o(f"v_dot2c_f32_bf16 {v(sS[r & 1])}, {s(sONE)}, {v(X + 16 * c + r)}")
            o(f"v_dot2c_f32_bf16 {v(sQn[r & 1])}, {v(X + 16 * c + r)}, {v(X + 16 * c + r)}")
    for r in vxr + [vx0, vx1]: ra.put(r)
    rstd, mr = stats_fin(o, ra, sS, sQn)
    vA = ra.get()
    vA2 = ra.get()
    vub = ra.get()
    vsc = ra.get()
    o(f"""v_add_u32 {v(vA)}, {A0}, {v(vL16)}
v_add_u32 {v(vA2)}, {QB}, {v(vL16)}
v_lshlrev_b32 {v(vub)}, 6, {v(vH)}
v_and_b32 v4, 31, {v(vL)}
s_lshl_b32 {s(sT0)}, {s(sW)}, 5
v_add_u32 v4, {s(sT0)}, v4
v_mul_u32_u24 {v(vsc)}, {RS}, v4""")
    stamp(o, "C", "xdone")
    o.barrier()
    stamp(o, "C", "B1")
    NR = 4
    ring = 4
    aK, aV = ra.get(16), ra.get(16)
    for g in chain(aK, vA, 0, X, ring, NR): o.extend(g)
    o.barrier()
    e = S()
    U, Bv = ra.get(16), ra.get(16)
    fold(e, vub, UB1, aK, U, Bv, rstd, mr)
    ra.put(Bv, 16)
    softmax(e, ra, aK, U)
    va = ra.get()
    e(f"v_lshl_add_u32 {v(va)}, {v(vH)}, 6, {v(vsc)}")
    for q in range(4):
        e(f"ds_write_b128 {v(va)}, {v(U + 4 * q, 4)} offset:{KB + 16 * q}")
    e(f"v_lshl_add_u32 {v(va)}, {v(vH)}, 5, {v(vsc)}")
    o.extend(merge(chain(aV, vA, 32768, X, ring, NR), e))
    o.barrier()
    Bv = ra.get(16)
    fold(o, vub, UB1 + 256, aV, U, Bv, rstd, mr)
    for k in range(8):
        o(f"v_cvt_pk_bf16_f32 {v(U + k)}, {v(aV + 2 * k)}, {v(aV + 2 * k + 1)}")
    for q in range(2):
        o(f"ds_write_b128 {v(va)}, {v(U + 4 * q, 4)} offset:{KB + 128 + 16 * q}")
    o(f"""v_lshrrev_b32 v4, 2, {v(vL)}
v_and_b32 v5, 3, {v(vL)}
v_mul_u32_u24 v4, {RS}, v4
v_lshl_add_u32 v4, v5, 3, v4
s_lshl_b32 {s(sT0)}, {s(sW)}, 5
s_lshr_b32 {s(sT1)}, {s(sW)}, 1
s_lshl_b32 {s(sT1)}, {s(sT1)}, 5
v_add_u32 v6, {s(sT1)}, v4
v_add_u32 v4, {s(sT0)}, v4
v_mov_b32 v8, {s(sONE)}
v_mov_b32 v9, {s(sONE)}
v_mov_b32 v10, {s(sONE)}
v_mov_b32 v11, {s(sONE)}
v_cmp_eq_u32 {s(sT2, 2)}, 1, v5
v_cmp_eq_u32 {s(sT4, 2)}, 2, v5
v_cmp_eq_u32 vcc, 3, v5
s_lshl_b32 {s(sT0)}, {s(sJ)}, 2
s_add_u32 {s(sT0)}, {s(sT0)}, {s(sW)}
s_lshl_b32 {s(sB0)}, {s(sT0)}, 14
s_add_u32 {s(sB0)}, {s(sB0)}, {W_KV}
s_lshl_b32 {s(sT0)}, {s(sI)}, 10
s_add_u32 {s(sT0)}, {s(sT0)}, {s(sB0)}""")
    o.barrier()
    for sx in range(4):
        for e_ in range(2):
            o(f"ds_read_b64_tr_b16 {v(aK + 4 * sx + 2 * e_, 2)}, v4 offset:{KB + (32 * sx + 16 * e_) * RS}")
            o(f"ds_read_b64_tr_b16 {v(aV + 4 * sx + 2 * e_, 2)}, v6 offset:{KB + 128 + (32 * sx + 16 * e_) * RS}")
    for sx in range(4):
        o(f"v_mfma_f32_16x16x32_bf16 v[12:15], {v(aK + 4 * sx, 4)}, {v(aV + 4 * sx, 4)}, {'0' if sx == 0 else 'v[12:15]'}")
        o(f"v_mfma_f32_16x16x32_bf16 v[16:19], {v(aK + 4 * sx, 4)}, v[8:11], {'0' if sx == 0 else 'v[16:19]'}")
    o(f"""v_mov_b32 v23, {s(sTAG)}
v_cvt_pk_bf16_f32 v20, v12, v13
v_cvt_pk_bf16_f32 v21, v14, v15
v_cndmask_b32 v22, v16, v19, vcc
v_cndmask_b32 v22, v22, v17, {s(sT2, 2)}
v_cndmask_b32 v22, v22, v18, {s(sT4, 2)}
buffer_store_dwordx4 v[20:23], {v(vL16)}, {srd(rWS)}, {s(sT0)} offen sc1""")
    stamp(o, "C", "kvpub")
    o.barrier()
    for g in chain(aK, vA2, 0, X, ring, NR): o.extend(g)
    fold(o, vub, UB1 + 512, aK, U, Bv, rstd, mr)
    ra.put(Bv, 16)
    softmax(o, ra, aK, U)
    ra.put(rstd); ra.put(mr); ra.put(va); ra.put(vsc)
    stamp(o, "C", "phiq")
    G = X
    l1, l2 = L("G"), L("G")
    o.waitall()
    o(f"""s_mov_b32 {s(sCNT)}, 0
{l1}:""")
    for p in range(16):
        if p % 4 == 0:
            o(f"s_add_u32 {s(sT0)}, {s(sB0)}, {p * 1024}")
        o(f"buffer_load_dwordx4 {v(G + 4 * p, 4)}, {v(vL16)}, {srd(rWS)}, {s(sT0)} offen offset:{(p % 4) * 1024} sc1")
    o(f"""s_mov_b32 {s(sT2)}, 0x3f80
s_mov_b32 {s(sT3)}, 0x3f800000
v_mov_b32 v4, 0
v_mov_b32 v5, 0
v_mov_b32 v6, 0
v_mov_b32 v7, 0
v_mov_b32 v8, 0
v_mov_b32 v9, 0""")
    for p in range(16):
        g = G + 4 * p
        o(f"""v_dot2c_f32_bf16 v4, {s(sT2)}, {v(g)}
v_dot2c_f32_bf16 v5, {s(sT3)}, {v(g)}
v_dot2c_f32_bf16 v6, {s(sT2)}, {v(g + 1)}
v_dot2c_f32_bf16 v7, {s(sT3)}, {v(g + 1)}
v_add_f32 v8, v8, {v(g + 2)}
v_xor_b32 {v(g + 3)}, {s(sTAG)}, {v(g + 3)}
v_or_b32 v9, v9, {v(g + 3)}""")
    o(f"""s_add_u32 {s(sCNT)}, {s(sCNT)}, 1
v_cmp_ne_u32 vcc, 0, v9
s_cmp_gt_u32 {s(sCNT)}, {SPIN}
s_cbranch_scc1 {l2}
s_cbranch_vccnz {l1}
{l2}:""")
    stamp(o, "C", "kvgot")
    o(f"""v_cvt_pk_bf16_f32 v4, v4, v5
v_cvt_pk_bf16_f32 v5, v6, v7
v_cvt_pk_bf16_f32 v8, v8, v8
v_and_b32 v10, 15, {v(vL)}
v_lshrrev_b32 v11, 4, {v(vL)}
v_mul_u32_u24 v12, 80, v10
v_lshl_add_u32 v12, v11, 3, v12
s_lshr_b32 {s(sT0)}, {s(sW)}, 1
s_mul_i32 {s(sT0)}, {s(sT0)}, 1280
s_and_b32 {s(sT1)}, {s(sW)}, 1
s_lshl_b32 {s(sT1)}, {s(sT1)}, 5
s_add_u32 {s(sT0)}, {s(sT0)}, {s(sT1)}
s_add_u32 {s(sT0)}, {s(sT0)}, {KVI}
v_add_u32 v12, {s(sT0)}, v12
ds_write_b64 v12, v[4:5]
v_and_b32 v10, 3, v10
v_lshlrev_b32 v10, 1, v10
v_lshl_add_u32 v10, v11, 3, v10
s_lshl_b32 {s(sT0)}, {s(sW)}, 5
s_add_u32 {s(sT0)}, {s(sT0)}, {ZI}
v_add_u32 v10, {s(sT0)}, v10
ds_write_b16 v10, v8""")
    o(f"""v_bfe_u32 v13, {v(vL)}, 2, 1
v_bfe_u32 v14, {v(vL)}, 3, 1
v_and_b32 v15, 3, {v(vL)}
v_lshl_add_u32 v15, v13, 3, v15
v_lshl_add_u32 v15, v14, 2, v15
v_lshl_add_u32 v15, {v(vH)}, 4, v15
v_mul_u32_u24 v15, 80, v15
v_add_u32 v15, {KVI}, v15
v_lshlrev_b32 v16, 6, {v(vH)}
v_add_u32 v16, {ZI}, v16
v_bfe_u32 v13, {v(vL)}, 4, 1
v_cmp_eq_u32 vcc, v13, {v(vH)}
v_mov_b32 v14, {ZERO}
v_cndmask_b32 v15, v14, v15, vcc
v_cndmask_b32 v16, v14, v16, vcc
s_lshl_b32 {s(sT0)}, {s(sI)}, 2
s_add_u32 {s(sT0)}, {s(sT0)}, {s(sW)}
s_lshl_b32 {s(sT0)}, {s(sT0)}, 4
s_add_u32 {s(sT0)}, {s(sT0)}, {s(sJ)}
s_lshl_b32 {s(sT0)}, {s(sT0)}, 11
s_add_u32 {s(sB0)}, {s(sT0)}, {W_O}""")
    o.barrier()
    for t in range(4):
        o(f"ds_read_b128 {v(G + 16 + 4 * t, 4)}, v16 offset:{16 * t}")
    for t in range(4):
        o(f"ds_read_b128 {v(G + 4 * t, 4)}, v15 offset:{16 * t}")
    for t in range(4):
        o(f"v_mfma_f32_32x32x16_bf16 {v(aV, 16)}, {v(G + 16 + 4 * t, 4)}, {v(U + 4 * t, 4)}, {'0' if t == 0 else v(aV, 16)}")
    for t in range(4):
        o(f"v_mfma_f32_32x32x16_bf16 {v(aK, 16)}, {v(G + 4 * t, 4)}, {v(U + 4 * t, 4)}, {'0' if t == 0 else v(aK, 16)}")
    o(f"""v_add_f32 v4, 0x358637bd, {v(aV)}
v_add_f32 v5, 0x358637bd, {v(aV + 8)}
v_rcp_f32 v4, v4
v_rcp_f32 v5, v5""")
    for t in range(2):
        for k in range(0, 8, 2):
            r = aK + 8 * t + k
            o(f"v_mul_f32 {v(r)}, v{4 + t}, {v(r)}")
            o(f"v_mul_f32 {v(r + 1)}, v{4 + t}, {v(r + 1)}")
            o(f"v_cvt_pk_bf16_f32 v{8 + 4 * t + k // 2}, {v(r)}, {v(r + 1)}")
        o(f"buffer_store_dwordx4 {v(8 + 4 * t, 4)}, {v(vL16)}, {srd(rWS)}, {s(sB0)} offen offset:{1024 * t} sc1")
    set_flag(o, W_OF, None, 4)
    stamp(o, "C", "opub")
    ra.put(U, 16); ra.put(aK, 16); ra.put(aV, 16)
    vta, vtb = ra.get(), ra.get()
    o(f"""v_bfe_u32 v4, {v(vL)}, 2, 2
v_lshlrev_b32 v4, 6, v4
v_lshl_add_u32 v4, {v(vH)}, 10, v4
v_bfe_u32 v5, {v(vL)}, 4, 1
v_lshl_add_u32 v4, v5, 5, v4
v_and_b32 v5, 1, {v(vL)}
v_lshl_add_u32 v4, v5, 4, v4
v_bfe_u32 v5, {v(vL)}, 1, 1
v_lshl_add_u32 v4, v5, 3, v4
s_and_b32 {s(sT1)}, {s(sW)}, 1
s_lshl_b32 {s(sT0)}, {s(sT1)}, 9
v_add_u32 {v(vta)}, {s(sT0)}, v4
v_xor_b32 {v(vtb)}, 0x200, {v(vta)}
s_lshl_b32 {s(sT0)}, {s(sT1)}, 15
s_add_u32 {s(sT0)}, {s(sT0)}, {A0}
v_add_u32 v4, {s(sT0)}, {v(vta)}
v_add_u32 v5, {s(sT0)}, {v(vtb)}""")
    WF = X
    for k in range(16):
        for ab in range(2):
            for e_ in range(2):
                o(f"ds_read_b64_tr_b16 {v(WF + 8 * k + 4 * ab + 2 * e_, 2)}, v{4 + ab} offset:{k * 2048 + e_ * 256}")
    XR = ra.get(8)
    vro = ra.get()
    o(f"""v_and_b32 v6, 31, {v(vL)}
v_lshlrev_b32 v6, 10, v6
v_lshl_add_u32 {v(vro)}, {v(vH)}, 4, v6
s_lshl_b32 {s(sT0)}, {s(sI)}, 1
s_lshr_b32 {s(sT2)}, {s(sJ)}, 3
s_add_u32 {s(sT0)}, {s(sT0)}, {s(sT2)}
s_lshl_b32 {s(sT0)}, {s(sT0)}, 1
s_lshr_b32 {s(sT2)}, {s(sW)}, 1
s_add_u32 {s(sB1)}, {s(sT0)}, {s(sT2)}
s_lshl_b32 {s(sT0)}, {s(sB1)}, 15
s_and_b32 {s(sT2)}, {s(sJ)}, 7
s_lshl_b32 {s(sT2)}, {s(sT2)}, 1
s_add_u32 {s(sT2)}, {s(sT2)}, {s(sT1)}
s_lshl_b32 {s(sT3)}, {s(sT2)}, 6
s_add_u32 {s(sT0)}, {s(sT0)}, {s(sT3)}
v_add_u32 {v(vro)}, {s(sT0)}, {v(vro)}
buffer_load_dwordx4 {v(XR, 4)}, {v(vro)}, {srd(rX)}, 0 offen
buffer_load_dwordx4 {v(XR + 4, 4)}, {v(vro)}, {srd(rX)}, 0 offen offset:32""")
    sX1 = 87
    o(f"""s_lshl_b32 {s(sX1)}, {s(sB1)}, 4
s_add_u32 {s(sX1)}, {s(sX1)}, {s(sT2)}
s_lshl_b32 {s(sX1)}, {s(sX1)}, 11
s_add_u32 {s(sX1)}, {s(sX1)}, {W_X1}""")
    vpf = ra.get()
    o(f"""s_lshl_b32 {s(sT0)}, {s(sI)}, 1
s_add_u32 {s(sT0)}, {s(sT0)}, {s(sT1)}
s_lshl_b32 {s(sT0)}, {s(sT0)}, 5
s_and_b32 {s(sT2)}, {s(sB1)}, 3
s_add_u32 {s(sT0)}, {s(sT0)}, {s(sT2)}
s_lshl_b32 {s(sT0)}, {s(sT0)}, 7
v_and_b32 v6, 7, {v(vL)}
v_lshlrev_b32 v6, 9, v6
v_add_u32 {v(vpf)}, {s(sT0)}, v6
s_lshl_b32 {s(sB0)}, {s(sB1)}, 1
s_add_u32 {s(sB0)}, {s(sB0)}, {s(sT1)}
s_lshl_b32 {s(sB0)}, {s(sB0)}, 14
s_add_u32 {s(sB0)}, {s(sB0)}, {W_O}
s_mov_b32 {s(sT5)}, {W_OF}""")
    o.barrier()
    poll_flags(o, vpf, s(sT5), 4)
    stamp(o, "C", "ogot")
    aA, aB = ra.get(16), ra.get(16)
    AC = [4 + 4 * k for k in range(7)] + [ra.get(4) for _ in range(9)]
    for k in range(16):
        if k % 4 == 0:
            o(f"s_add_u32 {s(sT0)}, {s(sB0)}, {k * 1024}")
        o(f"buffer_load_dwordx4 {v(AC[k], 4)}, {v(vL16)}, {srd(rWS)}, {s(sT0)} offen offset:{(k % 4) * 1024} sc1")
    for k in range(16):
        o(f"v_mfma_f32_32x32x16_bf16 {v(aB, 16)}, {v(WF + 8 * k + 4, 4)}, {v(AC[k], 4)}, {'0' if k == 0 else v(aB, 16)}")
        o(f"v_mfma_f32_32x32x16_bf16 {v(aA, 16)}, {v(WF + 8 * k, 4)}, {v(AC[k], 4)}, {'0' if k == 0 else v(aA, 16)}")
    for r in AC[7:]: ra.put(r, 4)
    vrw, vrr, vg = ra.get(), ra.get(), ra.get()

    def reduce_pair(goff, T, pre_barrier):
        if pre_barrier: o.barrier()
        for q in range(4):
            o(f"ds_write_b128 {v(vrw)}, {v(aB + 4 * q, 4)} offset:{1024 * q}")
        for q, off in enumerate((0, 16, 64, 80)):
            o(f"ds_read_b128 {v(T + 4 * q, 4)}, {v(vg)} offset:{GAB + goff + off}")
        for k in range(8):
            o(f"v_lshlrev_b32 {v(T + 32 + 2 * k)}, 16, {v(XR + k)}")
            o(f"v_and_b32 {v(T + 33 + 2 * k)}, 0xffff0000, {v(XR + k)}")
        o.barrier()
        for q in range(4):
            o(f"ds_read_b128 {v(T + 16 + 4 * q, 4)}, {v(vrr)} offset:{1024 * q}")
        for k in range(16):
            o(f"v_add_f32 {v(aA + k)}, {v(aA + k)}, {v(T + 16 + k)}")
            o(f"v_fma_f32 {v(aA + k)}, {v(T + k)}, {v(aA + k)}, {v(T + 32 + k)}")
            if k & 1:
                o(f"v_cvt_pk_bf16_f32 {v(XR + k // 2)}, {v(aA + k - 1)}, {v(aA + k)}")
    o(f"""s_lshl_b32 {s(sT0)}, {s(sW)}, 12
s_add_u32 {s(sT0)}, {s(sT0)}, {RB}
v_add_u32 {v(vrw)}, {s(sT0)}, {v(vL16)}
v_xor_b32 {v(vrr)}, 0x1000, {v(vrw)}
s_and_b32 {s(sT1)}, {s(sW)}, 1
s_lshl_b32 {s(sT1)}, {s(sT1)}, 7
v_lshlrev_b32 {v(vg)}, 5, {v(vH)}
v_add_u32 {v(vg)}, {s(sT1)}, {v(vg)}""")
    reduce_pair(0, X, False)
    for t in range(2):
        o(f"buffer_store_dwordx4 {v(XR + 4 * t, 4)}, {v(vL16)}, {srd(rWS)}, {s(sX1)} offen offset:{1024 * t} sc1")
    set_flag(o, W_XF, None, 4)
    stamp(o, "C", "x1pub")
    o(f"""s_lshl_b32 {s(sT0)}, {s(sI)}, 1
s_lshr_b32 {s(sT1)}, {s(sW)}, 1
s_add_u32 {s(sT0)}, {s(sT0)}, {s(sT1)}
s_lshl_b32 {s(sT0)}, {s(sT0)}, 4
s_and_b32 {s(sT1)}, {s(sW)}, 1
s_add_u32 {s(sT0)}, {s(sT0)}, {s(sT1)}
s_lshl_b32 {s(sT0)}, {s(sT0)}, 8
s_add_u32 {s(sT5)}, {s(sT0)}, {W_XF}
v_bfe_u32 v5, {v(vL)}, 1, 3
v_and_b32 v6, 1, {v(vL)}
v_lshlrev_b32 v5, 9, v5
v_lshl_add_u32 v5, v6, 7, v5
s_lshl_b32 {s(sT0)}, {s(sI)}, 2
s_add_u32 {s(sT0)}, {s(sT0)}, {s(sW)}
s_lshl_b32 {s(sB0)}, {s(sT0)}, 15
s_add_u32 {s(sB0)}, {s(sB0)}, {W_X1}
s_mul_i32 {s(sX1)}, {s(sT0)}, 86""")
    unit_of_j(o)
    o(f"""s_add_u32 {s(sX1)}, {s(sX1)}, {s(sU)}
s_lshl_b32 {s(sX1)}, {s(sX1)}, 10
s_add_u32 {s(sX1)}, {s(sX1)}, {W_H}""")
    sS = [ra.get(), ra.get()]; sQn = [ra.get(), ra.get()]
    for r in sS + sQn: o(f"v_mov_b32 {v(r)}, 0")
    o.barrier()
    poll_flags(o, 5, s(sT5), 4)
    stamp(o, "C", "x1got")
    for k in range(32):
        if k % 4 == 0:
            o(f"s_add_u32 {s(sT0)}, {s(sB0)}, {k * 1024}")
        o(f"buffer_load_dwordx4 {v(X + 4 * k, 4)}, {v(vL16)}, {srd(rWS)}, {s(sT0)} offen offset:{(k % 4) * 1024} sc1")
    aC = ra.get(16)
    accs = [aA, aB, aC]
    NR1 = 6
    def wr(n):
        k, cb = divmod(n, 3)
        r = 4 + 4 * (n % NR1)
        if cb < 2: return f"ds_read_b128 {v(r, 4)}, {v(vA)} offset:{cb * 32768 + k * 1024}"
        return f"ds_read_b128 {v(r, 4)}, {v(vA2)} offset:{k * 1024}"
    for n in range(NR1): o(wr(n))
    for n in range(96):
        k, cb = divmod(n, 3)
        r = 4 + 4 * (n % NR1)
        o(f"v_mfma_f32_32x32x16_bf16 {v(accs[cb], 16)}, {v(r, 4)}, {v(X + 4 * k, 4)}, {'0' if k == 0 else v(accs[cb], 16)}")
        if n + NR1 < 96: o(wr(n + NR1))
        for q in ((0,), (1, 2), (3,))[cb]:
            o(f"v_dot2c_f32_bf16 {v(sS[q & 1])}, {s(sONE)}, {v(X + 4 * k + q)}")
            o(f"v_dot2c_f32_bf16 {v(sQn[q & 1])}, {v(X + 4 * k + q)}, {v(X + 4 * k + q)}")
    rstd, mr = stats_fin(o, ra, sS, sQn)
    for cb in range(3):
        U = X + 32 * cb
        fold(o, vub, UB2 + 256 * cb, accs[cb], U, U + 16, rstd, mr)
        for k in range(8):
            o(f"v_cvt_pk_bf16_f32 {v(U + 16 + k)}, {v(accs[cb] + 2 * k)}, {v(accs[cb] + 2 * k + 1)}")
            o(f"v_pk_max_i16 {v(U + 16 + k)}, {v(U + 16 + k)}, 0")
        if cb == 2:
            o(f"s_add_u32 {s(sX1)}, {s(sX1)}, 4096")
        for t in range(2):
            st = f"buffer_store_dwordx4 {v(U + 16 + 4 * t, 4)}, {v(vL16)}, {srd(rWS)}, {s(sX1)} offen offset:{1024 * ((2 * cb + t) % 4)} sc1"
            if cb == 2 and t == 1:
                l6 = L()
                o(f"s_cmp_eq_u32 {s(sN6)}, 0\ns_cbranch_scc1 {l6}")
                o(st, opt=True)
                o(f"{l6}:")
            else:
                o(st)
    set_flag(o, W_HF, None, 4)
    stamp(o, "C", "hpub")
    ra.put(rstd); ra.put(mr); ra.put(aC, 16)
    PR = X
    o(f"""s_and_b32 {s(sT1)}, {s(sW)}, 1
s_mul_i32 {s(sT0)}, {s(sT1)}, {5 * 2048}
s_add_u32 {s(sT0)}, {s(sT0)}, {A0 + 48 * 2048}
v_add_u32 v4, {s(sT0)}, {v(vta)}
v_add_u32 v5, {s(sT0)}, {v(vtb)}""")
    for k in range(5):
        for ab in range(2):
            for e_ in range(2):
                o(f"ds_read_b64_tr_b16 {v(PR + 8 * k + 4 * ab + 2 * e_, 2)}, v{4 + ab} offset:{k * 2048 + e_ * 256}")
    o.barrier()
    w2a = [vta, vtb, ra.get(), ra.get()]
    o(f"""s_mul_i32 {s(sT0)}, {s(sT1)}, {38 * 2048}
s_add_u32 {s(sT0)}, {s(sT0)}, {A0}
v_add_u32 {v(vta)}, {s(sT0)}, {v(vta)}
v_add_u32 {v(vtb)}, {s(sT0)}, {v(vtb)}
v_add_u32 {v(w2a[2])}, {20 * 2048}, {v(vta)}
v_add_u32 {v(w2a[3])}, {20 * 2048}, {v(vtb)}
s_mul_i32 {s(sB0)}, {s(sB1)}, 86
s_mul_i32 {s(sT0)}, {s(sT1)}, 43
s_add_u32 {s(sB0)}, {s(sB0)}, {s(sT0)}
s_lshl_b32 {s(sB0)}, {s(sB0)}, 10
s_add_u32 {s(sB0)}, {s(sB0)}, {W_H}
s_mov_b32 {s(sT5)}, {W_HF}""")
    o.barrier()
    poll_flags(o, vpf, s(sT5), 4)
    stamp(o, "C", "hgot")
    pool = [X + 40 + 4 * k for k in range(22)]
    while True:
        try: pool.append(ra.get(4))
        except RuntimeError: break
    NA = len(pool)
    areg = {}
    issued = [0]
    def ld(reg):
        k = issued[0]; issued[0] += 1
        areg[k] = reg
        if k % 4 == 0:
            o(f"s_add_u32 {s(sT0)}, {s(sB0)}, {k * 1024}")
        o(f"buffer_load_dwordx4 {v(reg, 4)}, {v(vL16)}, {srd(rWS)}, {s(sT0)} offen offset:{(k % 4) * 1024} sc1")
    for r in pool: ld(r)
    NR2 = 3
    def wr2(t):
        r = 4 + 8 * ((t - 5) % NR2)
        sl = t - 5
        for ab in range(2):
            for e_ in range(2):
                base = w2a[ab + (2 if sl >= 20 else 0)]
                o(f"ds_read_b64_tr_b16 {v(r + 4 * ab + 2 * e_, 2)}, {v(base)} offset:{(sl % 20) * 2048 + e_ * 256}")
    for t in range(5, 5 + NR2): wr2(t)
    for t in range(43):
        r = PR + 8 * t if t < 5 else 4 + 8 * ((t - 5) % NR2)
        o(f"v_mfma_f32_32x32x16_bf16 {v(aB, 16)}, {v(r + 4, 4)}, {v(areg[t], 4)}, {'0' if t == 0 else v(aB, 16)}")
        o(f"v_mfma_f32_32x32x16_bf16 {v(aA, 16)}, {v(r, 4)}, {v(areg[t], 4)}, {'0' if t == 0 else v(aA, 16)}")
        if t >= 5 and t + NR2 < 43: wr2(t + NR2)
        if issued[0] < 43: ld(areg[t])
    reduce_pair(256, X, True)
    for t in range(2):
        o(f"buffer_store_dwordx4 {v(XR + 4 * t, 4)}, {v(vro)}, {srd(rOUT)}, 0 offen offset:{32 * t}")
    le = L()
    o(f"""s_or_b32 {s(sT0)}, s2, {s(sW)}
s_cbranch_scc1 {le}
v_mov_b32 v4, {s(sTAG)}
s_mov_b64 exec, 1""")
    o(f"buffer_store_dword v4, off, {srd(rWS)}, 0 sc1", opt=True)
    o(f"""s_mov_b64 exec, -1
{le}:""")
    dump_stamps(o, "C")
    o("s_endpgm")
    return o


def dump_stamps(o, role):
    if not STAMPS: return
    o.waitall()
    k = stamp_n[role]
    stamp_names[role].append("end")
    o(f"""s_memtime s[88:89]
s_memrealtime s[90:91]
s_lshl_b32 {s(sT0)}, s2, 3
s_add_u32 {s(sT0)}, {s(sT0)}, {s(sW)}
s_lshl_b32 {s(sT0)}, {s(sT0)}, 6
s_add_u32 {s(sT0)}, {s(sT0)}, {W_ST}
s_waitcnt lgkmcnt(0)
s_mov_b64 exec, 1""")
    regs = [ST0 + 2 * i for i in range(k)] + [88, 90]
    for i, r in enumerate(regs):
        o(f"v_mov_b32 v4, {s(r)}\nbuffer_store_dword v4, off, {srd(rWS)}, {s(sT0)} offset:{4 * (i if r != 90 else 15)}")


def unit_of_j(o):
    o(f"""s_and_b32 {s(sT2)}, {s(sJ)}, 7
s_lshr_b32 {s(sT3)}, {s(sJ)}, 3
s_mul_i32 {s(sU)}, {s(sT3)}, 43
s_mul_i32 {s(sT3)}, {s(sT2)}, 5
s_add_u32 {s(sU)}, {s(sU)}, {s(sT3)}
s_max_u32 {s(sT3)}, {s(sT2)}, 5
s_sub_u32 {s(sT3)}, {s(sT3)}, 5
s_add_u32 {s(sU)}, {s(sU)}, {s(sT3)}
s_cmp_ge_u32 {s(sT2)}, 5
s_cselect_b32 {s(sN6)}, 1, 0""")


def helper(vL, vL16, vH):
    o = S()
    ra = RA(32, 256)
    PH = ra.get(8)
    vwq, vw1, vw2 = ra.get(), ra.get(), ra.get()
    vf, vhd = ra.get(), ra.get()
    o(f"""v_bfe_u32 {v(vhd)}, {v(vL)}, 2, 1
v_bfe_u32 v4, {v(vL)}, 3, 2
v_and_b32 {v(vf)}, 3, {v(vL)}
v_lshl_add_u32 {v(vf)}, v4, 2, {v(vf)}
v_lshlrev_b32 v4, 1, {v(vf)}
v_lshl_add_u32 v4, {v(vhd)}, 9, v4
v_lshl_add_u32 v4, {v(vH)}, 8, v4
s_lshl_b32 {s(sT0)}, {s(sJ)}, 10""")
    o(f"""v_lshrrev_b32 v28, 2, {v(vL)}
v_lshrrev_b32 v29, 4, {v(vL)}
v_xor_b32 v29, v29, {v(vL)}
v_and_b32 v29, 3, v29
v_lshlrev_b32 v29, 4, v29
s_movk_i32 {s(sT1)}, 3072
v_mad_u32_u24 {v(vwq)}, v28, {s(sT1)}, v29
s_movk_i32 {s(sT1)}, 2752
v_mad_u32_u24 {v(vw1)}, v28, {s(sT1)}, v29
s_mul_i32 {s(sB0)}, {s(sHW)}, {128 * 3072}
s_lshl_b32 {s(sT1)}, {s(sJ)}, 6
s_add_u32 {s(sB0)}, {s(sB0)}, {s(sT1)}
s_lshl_b32 {s(sB1)}, {s(sHW)}, 13""")

    def wdma(voff, rs, stride, coloff, base, tok):
        for a in range(8):
            o(f"s_add_u32 {s(sT1)}, {s(sB0)}, {a * 16 * stride + coloff}")
            dma(o, voff, rs, s(sT1), s(sB1), base + a * 1024, tok)
    wdma(vwq, rWQ, 3072, 1024, KB, "wk")
    for e in range(8):
        o(f"buffer_load_ushort {v(PH + e)}, v4, {srd(rPH)}, {s(sT0)} offen offset:{32 * e}")
    wdma(vwq, rWQ, 3072, 2048, VB, "wv")
    o(f"""v_mov_b32 v24, 0
v_mov_b32 v25, 0
v_mov_b32 v26, 0
v_mov_b32 v27, 0
ds_write_b128 {v(vL16)}, v[24:27] offset:{UB1}
ds_write_b128 {v(vL16)}, v[24:27] offset:{UB1 + 1024}""")
    gemv_part(o, vL)
    o.barrier()
    o(f"""s_mul_i32 {s(sTAG)}, {s(sTAG)}, 0x9E3779B1
s_add_u32 {s(sTAG)}, {s(sTAG)}, 0x7F4A7C15""")
    BP = [ra.get(4), ra.get(4)]; BI = [ra.get(4), ra.get(4)]

    def onehot(dst, vsel, vcol):
        o(f"v_lshlrev_b32 v4, 3, {v(vH)}\nv_sub_u32 v4, {v(vcol)}, v4")
        o(f"v_mov_b32 v5, 0x3f80\nv_mov_b32 v6, 0x3f800000\nv_cmp_eq_u32 {s(sT2, 2)}, 0, {v(vsel)}")
        for q in range(4):
            o(f"""v_cmp_eq_u32 vcc, {2 * q}, v4
v_cndmask_b32 v7, 0, v5, vcc
v_cmp_eq_u32 vcc, {2 * q + 1}, v4
v_cndmask_b32 v7, v7, v6, vcc
v_cndmask_b32 {v(dst[0] + q)}, 0, v7, {s(sT2, 2)}
v_cndmask_b32 {v(dst[1] + q)}, v7, 0, {s(sT2, 2)}""")
    onehot(BI, vhd, vf)
    for q in range(4):
        o(f"""v_lshl_or_b32 v7, {v(PH + 2 * q + 1)}, 16, {v(PH + 2 * q)}
v_cndmask_b32 {v(BP[0] + q)}, 0, v7, {s(sT2, 2)}
v_cndmask_b32 {v(BP[1] + q)}, v7, 0, {s(sT2, 2)}""")
    ra.put(PH, 8)
    var = [[ra.get(), ra.get()] for _ in range(2)]
    vwr = [ra.get(), ra.get()]
    vubw, vsr, vd16 = ra.get(), ra.get(), ra.get()
    o(f"""v_bfe_u32 v4, {v(vL)}, 3, 1
v_lshl_add_u32 v4, {v(vhd)}, 1, v4
v_and_b32 v5, 3, {v(vL)}
v_lshl_add_u32 {v(vd16)}, v4, 2, v5
v_and_b32 v5, 16, {v(vL)}
v_add_u32 v5, v5, {v(vd16)}
v_xor_b32 v4, v4, {v(vH)}
v_lshlrev_b32 v4, 4, v4
v_lshl_add_u32 v4, v5, 6, v4
s_add_u32 {s(sT0)}, {s(sB1)}, {A0}
v_xor_b32 v5, 32, v4
v_add_u32 {v(var[0][0])}, {s(sT0)}, v4
v_add_u32 {v(var[0][1])}, {s(sT0)}, v5
v_add_u32 {v(var[1][0])}, 0x10000, {v(var[0][0])}
v_add_u32 {v(var[1][1])}, 0x10000, {v(var[0][1])}
v_add_u32 {v(vwr[0])}, {s(sT0)}, {v(vL16)}
v_add_u32 {v(vwr[1])}, 0x10000, {v(vwr[0])}
v_lshl_add_u32 v4, {v(vhd)}, 4, {v(vf)}
v_lshlrev_b32 {v(vubw)}, 2, v4
s_lshl_b32 {s(sT0)}, {s(sHW)}, 9
v_lshlrev_b32 v4, 5, {v(vH)}
v_add_u32 {v(vsr)}, {s(sT0)}, v4""")

    def pregemm(ty, Bop, D, tok):
        bs, off = (1, 0) if ty == 2 else (0, ty * 32768)
        o.wait(tok)
        T = ra.get(32)
        for kb in range(4):
            for hd in range(2):
                o(f"ds_read_b128 {v(T + 8 * kb + 4 * hd, 4)}, {v(var[bs][hd])} offset:{off + kb * 2048}")
        for kb in range(4):
            for hd in range(2):
                o(f"v_mfma_f32_32x32x16_bf16 {v(D + 16 * kb, 16)}, {v(T + 8 * kb + 4 * hd, 4)}, {v(Bop[hd], 4)}, {'0' if hd == 0 else v(D + 16 * kb, 16)}")
        ra.put(T, 32)

    def rd16(dst, base, kb):
        for q, off in enumerate((0, 16, 64, 80)):
            o(f"ds_read_b128 {v(dst + 4 * q, 4)}, {v(vsr)} offset:{base + kb * 128 + off}")

    def scale(ty, D, P):
        bs, off = (1, 0) if ty == 2 else (0, ty * 32768)
        Sx = [ra.get(16), ra.get(16)]
        rd16(Sx[0], MODS, 0)
        for kb in range(4):
            if kb < 3: rd16(Sx[(kb + 1) & 1], MODS, kb + 1)
            sx = Sx[kb & 1]
            for k in range(0, 16, 2):
                o(f"v_mul_f32 {v(sx + k)}, {v(sx + k)}, {v(D + 16 * kb + k)}")
                o(f"v_mul_f32 {v(sx + k + 1)}, {v(sx + k + 1)}, {v(D + 16 * kb + k + 1)}")
                o(f"v_cvt_pk_bf16_f32 {v(P + 8 * kb + k // 2)}, {v(sx + k)}, {v(sx + k + 1)}")
                if k % 8 == 6:
                    t = k // 8
                    o(f"ds_write_b128 {v(vwr[bs])}, {v(P + 8 * kb + 4 * t, 4)} offset:{off + kb * 2048 + t * 1024}")
        ra.put(Sx[0], 16); ra.put(Sx[1], 16)

    def ub(D, P, ubo):
        Sx = [ra.get(16), ra.get(16)]
        rd16(Sx[0], MODB, 0)
        o("v_mov_b32 v4, 0\nv_mov_b32 v5, 0\nv_mov_b32 v6, 0")
        for kb in range(4):
            if kb < 3: rd16(Sx[(kb + 1) & 1], MODB, kb + 1)
            for k in range(8):
                o(f"v_dot2c_f32_bf16 v4, {s(sONE)}, {v(P + 8 * kb + k)}")
            for k in range(16):
                o(f"v_fmac_f32 v{5 + (k & 1)}, {v(Sx[kb & 1] + k)}, {v(D + 16 * kb + k)}")
        o(f"""v_add_f32 v5, v5, v6
ds_add_f32 {v(vubw)}, v4 offset:{ubo}
ds_add_f32 {v(vubw)}, v5 offset:{ubo + 128}""")
        ra.put(Sx[0], 16); ra.put(Sx[1], 16)

    def modpoll(offs, offb, extra=False):
        l1, l2 = L("M"), L("M")
        o(f"""s_lshl_b32 {s(sT0)}, {s(sHW)}, 10
s_add_u32 {s(sT1)}, {s(sT0)}, {W_MOD + offb * 8}
s_add_u32 {s(sT0)}, {s(sT0)}, {W_MOD + offs * 8}
s_lshl_b32 {s(sT4)}, {s(sHW)}, 9
v_lshlrev_b32 v20, 3, {v(vL)}
v_add_u32 v20, {s(sT4)}, v20""")
        if extra:
            o(f"""s_and_b32 {s(sT4)}, {s(sJ)}, 7
s_lshl_b32 {s(sT4)}, {s(sT4)}, 9
s_add_u32 {s(sT4)}, {s(sT4)}, {W_MOD + 1024 * 8}
v_mul_u32_u24 v21, {1536 * 8 - 512}, {v(vH)}
v_add_u32 v21, v21, {v(vL16)}
v_lshlrev_b32 v22, 3, {v(vL)}""")
        o.waitall()
        o(f"""s_mov_b32 {s(sCNT)}, 0
{l1}:
buffer_load_dwordx4 v[4:7], {v(vL16)}, {srd(rWS)}, {s(sT0)} offen sc1
buffer_load_dwordx4 v[8:11], {v(vL16)}, {srd(rWS)}, {s(sT1)} offen sc1""")
        if extra:
            o(f"buffer_load_dwordx4 v[12:15], v21, {srd(rWS)}, {s(sT4)} offen sc1")
        o(f"""s_add_u32 {s(sCNT)}, {s(sCNT)}, 1
s_waitcnt vmcnt(0)
v_xor_b32 v5, {s(sTAG)}, v5
v_xor_b32 v7, {s(sTAG)}, v7
v_xor_b32 v9, {s(sTAG)}, v9
v_xor_b32 v11, {s(sTAG)}, v11
v_or3_b32 v5, v5, v7, v9
v_or_b32 v5, v5, v11""")
        if extra:
            o(f"""v_xor_b32 v13, {s(sTAG)}, v13
v_xor_b32 v15, {s(sTAG)}, v15
v_or3_b32 v5, v5, v13, v15""")
        o(f"""v_cmp_ne_u32 vcc, 0, v5
s_cmp_gt_u32 {s(sCNT)}, {SPIN}
s_cbranch_scc1 {l2}
s_cbranch_vccnz {l1}
{l2}:
ds_write2_b32 v20, v4, v6 offset1:1
v_add_u32 v20, {MODB}, v20
ds_write2_b32 v20, v8, v10 offset1:1""")
        if extra:
            o(f"v_add_u32 v22, {GAB}, v22\nds_write2_b32 v22, v12, v14 offset1:1")

    DK, DV = ra.get(64), ra.get(64)
    pregemm(0, BP, DK, "wk")
    pregemm(1, BI, DV, "wv")
    stamp(o, "H", "pre")
    modpoll(512, 0)
    stamp(o, "H", "mod")
    PK = ra.get(32)
    scale(0, DK, PK)
    o.barrier()
    stamp(o, "H", "B1")
    wdma(vwq, rWQ, 3072, 0, QB, "wq")
    sW2 = 87
    o(f"""v_bfe_u32 v4, {v(vL)}, 2, 3
v_and_b32 v5, 3, {v(vL)}
v_lshlrev_b32 v5, 4, v5
v_lshl_add_u32 v5, {v(vH)}, 6, v5
v_lshl_add_u32 {v(vw2)}, v4, 10, v5
s_and_b32 {s(sW2)}, {s(sJ)}, 7
s_lshl_b32 {s(sW2)}, {s(sW2)}, 7
s_lshl_b32 {s(sT0)}, {s(sHW)}, 13
s_add_u32 {s(sW2)}, {s(sW2)}, {s(sT0)}
s_lshl_b32 {s(sN6)}, {s(sHW)}, 10""")

    def pieces(rs, lst, tok):
        for sl, un in lst:
            o(f"s_add_u32 {s(sT1)}, {s(sW2)}, {un * 16384}")
            dma(o, vw2, rs, s(sT1), s(sN6), A0 + sl * 2048, tok)

    def pieces1(rs, sl, un, sl2, un2, tok):
        o(f"""s_mov_b32 {s(sT2)}, {un * 16384}
s_mov_b32 {s(sT3)}, {A0 + sl * 2048}
s_cmp_gt_u32 {s(sHW)}, 1
s_cselect_b32 {s(sT2)}, {(un2 - 1) * 16384}, {s(sT2)}
s_cselect_b32 {s(sT3)}, {A0 + (sl2 - 1) * 2048}, {s(sT3)}
s_add_u32 {s(sT1)}, {s(sW2)}, {s(sT2)}
s_add_u32 m0, {s(sN6)}, {s(sT3)}""")
        o(f"buffer_load_dwordx4 {v(vw2)}, {srd(rs)}, {s(sT1)} offen lds", tok=tok)
    ub(DK, PK, UB1)
    scale(1, DV, PK)
    o.barrier()
    ub(DV, PK, UB1 + 256)
    pieces(rW2, [(48, 0), (50, 2), (54, 44), (56, 46)], "w2a")
    pieces1(rW2, 52, 4, 53, 43, "w2a")
    pieces(rW2, [(58 + 2 * k, 68 + 2 * k) for k in range(5)], "w2a")
    o.barrier()
    o.barrier()
    pregemm(2, BP, DK, "wq")
    scale(2, DK, PK)
    ub(DK, PK, UB1 + 512)
    o.barrier()
    stamp(o, "H", "B4")
    pieces(rWO, [(2 * k, 2 * k) for k in range(16)], "wo")
    modpoll(2048, 1536, extra=True)
    stamp(o, "H", "wo")
    o.barrier()
    vsel = ra.get()
    o(f"v_bfe_u32 {v(vsel)}, {v(vL)}, 4, 1")
    onehot(BI, vsel, vd16)
    unit_of_j(o)
    o(f"""s_lshl_b32 {s(sN6)}, {s(sHW)}, 10
s_mul_i32 {s(sB0)}, {s(sHW)}, {128 * 2752}
s_lshl_b32 {s(sT1)}, {s(sU)}, 5
s_add_u32 {s(sB0)}, {s(sB0)}, {s(sT1)}""")
    o.barrier()
    for cb in range(3):
        wdma(vw1, rW1, 2752, 64 * cb, A0 + 32768 * cb, f"w1{cb}")
    for cb in range(3):
        pregemm(cb, BI, DK, f"w1{cb}")
        scale(cb, DK, PK)
        ub(DK, PK, UB2 + 256 * cb)
        if cb == 0:
            stamp(o, "H", "w1a")
            o.barrier()
    stamp(o, "H", "w1c")
    o.barrier()
    pieces(rW2, [(68 + 2 * k, 78 + 2 * k) for k in range(4)], "w2b")
    o.barrier()
    stamp(o, "H", "B9")
    lst = []
    for k in range(19):
        lst.append((2 * k, 5 + 2 * k))
        if k < 10: lst.append((38 + 2 * k, 48 + 2 * k))
    pieces(rW2, lst, "w2c")
    o.waitall()
    stamp(o, "H", "w2c")
    o.barrier()
    o.barrier()
    o.barrier()
    dump_stamps(o, "H")
    return o


if __name__ == "__main__":
    body = build()
    ref = open(f"cdna_kernels/{KNAME}.s.ref").read().split("\n")
    head = [l for l in ref if l.startswith(";") and "@launch" not in l]
    txt = "\n".join(head) + f"\n; @launch grid=(256,1,1) block=(512,1,1) lds={LDS}\n"
    txt += f""".amdgcn_target "amdgcn-amd-amdhsa--gfx950"
.text
.globl {KNAME}_kernel
.p2align 8
.type {KNAME}_kernel,@function
{KNAME}_kernel:
{body}.section .rodata,"a"
.p2align 6
.amdhsa_kernel {KNAME}_kernel
  .amdhsa_next_free_vgpr 256
  .amdhsa_next_free_sgpr 102
  .amdhsa_accum_offset 256
  .amdhsa_group_segment_fixed_size 0
  .amdhsa_kernarg_size 96
  .amdhsa_user_sgpr_count 2
  .amdhsa_user_sgpr_kernarg_segment_ptr 1
  .amdhsa_system_sgpr_workgroup_id_x 1
.end_amdhsa_kernel
"""
    open(sys.argv[1], "w").write(txt)
    if STAMPS:
        import json
        json.dump(stamp_names, open(sys.argv[1] + ".stamps.json", "w"))
```
